```python
import torch

def _softmax(x, axis=-1):
    return torch.softmax(x, dim=axis)

def _gelu(x):
    return torch.nn.functional.gelu(x, approximate='tanh')

def _silu(x):
    return torch.nn.functional.silu(x)

def _sigmoid(x):
    return torch.sigmoid(x)

def _layernorm(x, axis=-1, eps=1e-05):
    m = x.mean(dim=axis, keepdim=True)
    v = x.var(dim=axis, keepdim=True, unbiased=False)
    return (x - m) / torch.sqrt(v + eps)

def _scatter_add(tgt, idx, src, axis=0):
    return tgt.clone().index_add_(axis, idx, src)

def _segment_sum(src, seg, n):
    out = torch.zeros((n,) + src.shape[1:], dtype=src.dtype)
    return out.index_add_(0, seg, src)

def _pad(x, pw):
    flat = tuple((v for pair in reversed(pw) for v in pair))
    return torch.nn.functional.pad(x, flat)
kernel_name = 'standalone__autoregressive_conv_wavernn__speech'

def setup_inputs():

    _w = lambda a: (lambda t: t.to(torch.bfloat16) if t.is_floating_point() else t)(torch.as_tensor(a))
    B, T, D, K = (2, 1000, 512, 5)
    return {'x': _w((lambda *s: torch.randn(*s, dtype=torch.bfloat16) * 0.05)(B, T, D)), 'w': _w((lambda *s: torch.randn(*s, dtype=torch.bfloat16) * 0.05)(K, D, 2 * D))}

def reference(x, w):
    B, T, D = x.shape
    K = w.shape[0]
    dil = 2
    pad = (K - 1) * dil
    xp = _pad(x, ((0, 0), (pad, 0), (0, 0)))
    h = torch.einsum('btd,de->bte', xp[:, 0:T, :], w[0])
    for i in range(1, K):
        h = h + torch.einsum('btd,de->bte', xp[:, i * dil:i * dil + T, :], w[i])
    f, g = (h[..., :D].clone(), h[..., D:].clone())
    return torch.tanh(f) * _sigmoid(g)
```

```python
import sys

NAME = "standalone__autoregressive_conv_wavernn__speech"
T, D, N2 = 1000, 512, 1024
ROWB = D * 2
XBATCH = T * ROWB
WBYTES = 5 * D * N2 * 2
LDS_WAVE = 136 * 256
LDS_TOTAL = 4 * LDS_WAVE

S_X, S_W, S_O = 4, 6, 8
SRD_X, SRD_W, SRD_O = 12, 16, 20
S_NT, S_MT, S_B, S_T0, S_E0, S_WAVE = 24, 25, 26, 27, 28, 29
S_SELLO, S_SELHI = 30, 31
S_WB = 32
S_SOFF = 33
S_LDSB = 38
S_FIX = 39
S_TMP = 40
S_C1, S_C2 = 41, 42
S_TMP2 = 43
V_LANE, V_T1, V_T2, V_T3 = 1, 2, 3, 23
V_A = 4
V_B = 14
V_D = 22
V_DT = 24
V_O = 25
V_L16 = 26
V_E = 27
V_AF = 32
V_RAW = 96
V_OP = 144
NV = 176
NACC = 128


class Emitter:
    def __init__(self):
        self.lines = []
        self.vm = []
        self.vm_done = 0

    def emit(self, s):
        self.lines.append("    " + s)

    def label(self, s):
        self.lines.append(s + ":")

    def comment(self, s):
        self.lines.append("    ; " + s)

    def vmem(self, s, tag):
        self.lines.append("    " + s)
        self.vm.append(tag)
        assert len(self.vm) - self.vm_done <= 63, "too many outstanding vmem ops"

    def wait_vm(self, tag):
        idx = [k for k, t in enumerate(self.vm) if t == tag]
        assert idx, f"no op with tag {tag}"
        last = idx[-1]
        if last < self.vm_done:
            return None
        n = len(self.vm) - 1 - last
        self.vm_done = last + 1
        assert n <= 63
        return f"s_waitcnt vmcnt({n})"

    def text(self):
        return "\n".join(self.lines) + "\n"


def acc(a, t):
    return (a * 4 + t) * 4


def gen():
    E = Emitter()
    e = E.emit
    e("s_cmp_ge_u32 s2, 256")
    e("s_cbranch_scc1 L_end")
    e(f"s_load_dwordx4 s[{S_X}:{S_X+3}], s[0:1], 0")
    e(f"s_load_dwordx2 s[{S_O}:{S_O+1}], s[0:1], 16")
    e(f"s_and_b32 s{S_TMP}, s2, 7")
    e(f"s_lshr_b32 s{S_TMP2}, s2, 3")
    e(f"s_lshl_b32 s{S_NT}, s{S_TMP}, 1")
    e(f"s_and_b32 s{S_TMP}, s{S_TMP2}, 1")
    e(f"s_add_u32 s{S_NT}, s{S_NT}, s{S_TMP}")
    e(f"s_lshr_b32 s{S_MT}, s{S_TMP2}, 1")
    e(f"s_lshr_b32 s{S_B}, s{S_MT}, 3")
    e(f"s_and_b32 s{S_MT}, s{S_MT}, 7")
    e(f"s_lshl_b32 s{S_T0}, s{S_MT}, 7")
    e(f"s_lshl_b32 s{S_E0}, s{S_NT}, 5")
    e(f"v_and_b32 v{V_LANE}, 63, v0")
    e(f"v_lshrrev_b32 v{V_T1}, 6, v0")
    e(f"s_mov_b32 s{S_SELLO}, 0x05040100")
    e(f"v_readfirstlane_b32 s{S_WAVE}, v{V_T1}")
    e(f"s_mov_b32 s{S_SELHI}, 0x07060302")
    e(f"s_mov_b32 s{S_C1}, 0x4038aa3b")
    e(f"s_mov_b32 s{S_C2}, 0xbfb8aa3b")
    e(f"s_mul_i32 s{S_LDSB}, s{S_WAVE}, {LDS_WAVE}")
    e(f"s_lshl_b32 s{S_WB}, s{S_WAVE}, 18")
    e(f"s_lshl_b32 s{S_TMP}, s{S_E0}, 1")
    e(f"s_add_u32 s{S_WB}, s{S_WB}, s{S_TMP}")
    e(f"v_lshrrev_b32 v{V_T2}, 4, v{V_LANE}")
    e(f"v_and_b32 v{V_T3}, 15, v{V_LANE}")
    e(f"v_lshlrev_b32 v{V_B}, 14, v{V_T2}")
    e(f"v_lshl_add_u32 v{V_B}, v{V_T3}, 2, v{V_B}")
    for j in range(1, 8):
        e(f"v_add_u32 v{V_B+j}, {j*2048}, v{V_B}")
    e(f"v_lshrrev_b32 v{V_D}, 3, v{V_LANE}")
    e(f"s_sub_u32 s{S_TMP}, s{S_T0}, 8")
    e(f"v_add_u32 v{V_D}, s{S_TMP}, v{V_D}")
    e(f"v_lshlrev_b32 v{V_D}, 10, v{V_D}")
    e(f"v_lshlrev_b32 v{V_E}, 1, v{V_T2}")
    e(f"v_and_b32 v{V_E}, 6, v{V_E}")
    e(f"v_and_b32 v{V_E+1}, 7, v{V_LANE}")
    e(f"v_xor_b32 v{V_E}, v{V_E}, v{V_E+1}")
    e(f"v_lshlrev_b32 v{V_E}, 4, v{V_E}")
    e(f"s_lshl_b32 s{S_TMP}, s{S_WAVE}, 8")
    e(f"v_add3_u32 v{V_D}, v{V_D}, v{V_E}, s{S_TMP}")
    e(f"s_cmp_eq_u32 s{S_T0}, 0")
    e(f"s_cselect_b32 s{S_FIX}, 0x40000000, 0")
    e(f"v_lshlrev_b32 v{V_E}, 7, v{V_T3}")
    e(f"v_add_u32 v{V_E}, s{S_LDSB}, v{V_E}")
    e(f"v_lshrrev_b32 v{V_E+1}, 1, v{V_T3}")
    e(f"v_lshlrev_b32 v{V_E+2}, 4, v{V_T2}")
    for i in range(5):
        e(f"v_add_u32 v{V_E+3}, {i}, v{V_E+1}")
        e(f"v_and_b32 v{V_E+3}, 3, v{V_E+3}")
        e(f"v_lshlrev_b32 v{V_E+3}, 5, v{V_E+3}")
        e(f"v_xor_b32 v{V_E+3}, v{V_E+3}, v{V_E+2}")
        e(f"v_add_u32 v{V_A+2*i}, v{V_E}, v{V_E+3}")
        if i:
            e(f"v_add_u32 v{V_A+2*i}, {i*256}, v{V_A+2*i}")
        e(f"v_xor_b32 v{V_A+2*i+1}, 64, v{V_A+2*i}")
    e(f"v_lshlrev_b32 v{V_L16}, 4, v{V_LANE}")
    e(f"v_lshlrev_b32 v{V_O}, 2, v{V_T2}")
    e(f"v_add_u32 v{V_O}, s{S_T0}, v{V_O}")
    e(f"v_lshlrev_b32 v{V_O}, 10, v{V_O}")
    e(f"v_lshlrev_b32 v{V_E}, 2, v{V_T3}")
    e(f"s_lshl_b32 s{S_TMP}, s{S_E0}, 1")
    e(f"v_add3_u32 v{V_O}, v{V_O}, v{V_E}, s{S_TMP}")
    e("s_waitcnt lgkmcnt(0)")
    e(f"s_mul_i32 s{S_TMP}, s{S_B}, {XBATCH}")
    e(f"s_add_u32 s{SRD_X}, s{S_X}, s{S_TMP}")
    e(f"s_addc_u32 s{SRD_X+1}, s{S_X+1}, 0")
    e(f"s_and_b32 s{SRD_X+1}, s{SRD_X+1}, 0xffff")
    e(f"s_mov_b32 s{SRD_X+2}, {XBATCH}")
    e(f"s_mov_b32 s{SRD_X+3}, 0x00020000")
    e(f"s_mov_b32 s{SRD_W}, s{S_W}")
    e(f"s_and_b32 s{SRD_W+1}, s{S_W+1}, 0xffff")
    e(f"s_mov_b32 s{SRD_W+2}, {WBYTES}")
    e(f"s_mov_b32 s{SRD_W+3}, 0x00020000")
    e(f"s_add_u32 s{SRD_O}, s{S_O}, s{S_TMP}")
    e(f"s_addc_u32 s{SRD_O+1}, s{S_O+1}, 0")
    e(f"s_and_b32 s{SRD_O+1}, s{SRD_O+1}, 0xffff")
    e(f"s_mov_b32 s{SRD_O+2}, {XBATCH}")
    e(f"s_mov_b32 s{SRD_O+3}, 0x00020000")

    NS = 20

    def step_cfg(s):
        return s // 10, (s % 10) // 2, s % 2

    def b_loads(s):
        c, i, u = step_cfg(s)
        so = S_SOFF + (s % 4)
        rb = V_RAW + (s % 3) * 16
        lst = [("s", f"s_add_u32 s{so}, s{S_WB}, {(i*512 + 64*c + 32*u) * 2048}")]
        for j in range(8):
            lst.append(("v", f"buffer_load_dword v{rb+j}, v{V_B+j}, s[{SRD_W}:{SRD_W+3}], s{so} offen", ("B", s)))
        for j in range(8):
            lst.append(("v", f"buffer_load_dword v{rb+8+j}, v{V_B+j}, s[{SRD_W}:{SRD_W+3}], s{so} offen offset:1024", ("B", s)))
        return lst

    def dma_chunk(c):
        lst = []
        for g in range(17):
            lst.append(("s", f"s_add_u32 m0, s{S_LDSB}, {c*17408 + g*1024}"))
            if g == 0:
                lst.append(("s", f"s_add_u32 s{S_TMP}, s{S_FIX}, {128*c}"))
                lst.append(("s", f"v_add_u32 v{V_DT}, s{S_TMP}, v{V_D}"))
            else:
                lst.append(("s", f"v_add_u32 v{V_DT}, {128*c + g*8192}, v{V_D}"))
            lst.append(("v", f"buffer_load_dwordx4 v{V_DT}, s[{SRD_X}:{SRD_X+3}], 0 offen lds", ("X", c)))
        return lst

    def perms(s):
        rb = V_RAW + (s % 3) * 16
        ob = V_OP + (s % 2) * 16
        lst = []
        for h in range(2):
            for q in range(4):
                lst.append(("s", f"v_perm_b32 v{ob+(2*h)*4+q}, v{rb+8*h+2*q+1}, v{rb+8*h+2*q}, s{S_SELLO}"))
                lst.append(("s", f"v_perm_b32 v{ob+(2*h+1)*4+q}, v{rb+8*h+2*q+1}, v{rb+8*h+2*q}, s{S_SELHI}"))
        return lst

    def a_reads(s):
        c, i, u = step_cfg(s)
        ab = V_AF + (s % 2) * 32
        return [("s", f"ds_read_b128 v[{ab+4*a}:{ab+4*a+3}], v{V_A+2*i+u} offset:{c*17408 + a*2048}") for a in range(8)]

    def put(lst):
        for it in lst:
            if it[0] == "v":
                E.vmem(it[1], it[2])
            else:
                e(it[1])

    put(b_loads(0))
    put(dma_chunk(0))
    put(b_loads(1))
    w1 = E.wait_vm(("X", 0))
    e(w1)
    put(perms(0))
    put(a_reads(0))
    put(b_loads(2))

    for s in range(NS):
        c, i, u = step_cfg(s)
        e("s_waitcnt lgkmcnt(0)")
        ab = V_AF + (s % 2) * 32
        ob = V_OP + (s % 2) * 16
        mf = []
        for a in range(8):
            for t in range(4):
                k = acc(a, t)
                cin = f"a[{k}:{k+3}]" if s > 0 else "0"
                mf.append(("s", f"v_mfma_f32_16x16x32_bf16 a[{k}:{k+3}], v[{ab+4*a}:{ab+4*a+3}], v[{ob+4*t}:{ob+4*t+3}], {cin}"))
        plan = []
        if s + 3 < NS:
            plan += [("L", it) for it in b_loads(s + 3)]
        if s + 1 < NS:
            if step_cfg(s + 1)[0] == 1 and step_cfg(s)[0] == 0:
                plan.append(("WX", 1))
            plan += [("L", it) for it in a_reads(s + 1)]
            plan.append(("WB", s + 1))
            plan += [("L", it) for it in perms(s + 1)]
        if s < 4:
            d1 = dma_chunk(1)
            cuts = [0, 5, 9, 13, 17]
            plan += [("L", it) for it in d1[3 * cuts[s] + (1 if cuts[s] else 0): 3 * cuts[s + 1] + 1]]
        nm, nf = len(mf), len(plan)
        fi = 0
        for k, m in enumerate(mf):
            e(m[1])
            want = (nf * (k + 1) + nm - 1) // nm
            while fi < min(want, nf):
                p = plan[fi]
                fi += 1
                if p[0] == "L":
                    put([p[1]])
                elif p[0] == "WX":
                    w = E.wait_vm(("X", p[1]))
                    if w:
                        e(w)
                elif p[0] == "WB":
                    w = E.wait_vm(("B", p[1]))
                    if w:
                        e(w)

    e("s_nop 7")
    e("s_nop 3")
    e(f"v_add_u32 v{V_T1}, s{S_LDSB}, v{V_L16}")
    for w in range(4):
        if w < 3:
            e(f"s_cmp_eq_u32 s{S_WAVE}, {w}")
            e(f"s_cbranch_scc1 L_fin{w}")
        else:
            e(f"s_branch L_fin{w}")
    VT = V_AF
    VS = V_AF + 96
    for w in range(4):
        E.label(f"L_fin{w}")
        for q in range(4):
            if q == w:
                continue
            for idx in range(8):
                k = 32 * q + 4 * idx
                e(f"ds_write_b128 v{V_T1}, a[{k}:{k+3}] offset:{q*8192 + idx*1024}")
        src = [p for p in range(4) if p != w]
        for n, p in enumerate(src):
            e(f"v_add_u32 v{V_E+n}, {p*LDS_WAVE + w*8192}, v{V_L16}")
        for idx in range(32):
            e(f"v_accvgpr_read_b32 v{VS+idx}, a{32*w+idx}")
        e("s_waitcnt lgkmcnt(0)")
        e("s_barrier")
        reads = [f"ds_read_b128 v[{VT+32*n+4*idx}:{VT+32*n+4*idx+3}], v{V_E+n} offset:{idx*1024}"
                 for n in range(3) for idx in range(8)]
        for r_ in reads[:12]:
            e(r_)
        e("s_waitcnt lgkmcnt(4)")
        for r_ in reads[12:20]:
            e(r_)
        for idx in range(32):
            e(f"v_add_f32 v{VS+idx}, v{VS+idx}, v{VT+idx}")
        e("s_waitcnt lgkmcnt(4)")
        for r_ in reads[20:]:
            e(r_)
        for idx in range(32):
            e(f"v_add_f32 v{VS+idx}, v{VS+idx}, v{VT+32+idx}")
        e("s_waitcnt lgkmcnt(0)")
        for idx in range(32):
            e(f"v_add_f32 v{VS+idx}, v{VS+idx}, v{VT+64+idx}")
        G = VT
        outs = []
        for al in range(2):
            for r in range(4):
                for par in range(2):
                    f = VS + (al * 4 + par) * 4 + r
                    g = VS + (al * 4 + 2 + par) * 4 + r
                    outs.append((al, r, par, f, g))
        for n, (al, r, par, f, g) in enumerate(outs):
            e(f"v_mul_f32 v{G+2*n}, s{S_C1}, v{f}")
            e(f"v_mul_f32 v{G+2*n+1}, s{S_C2}, v{g}")
        for n in range(16):
            e(f"v_exp_f32 v{G+2*n}, v{G+2*n}")
            e(f"v_exp_f32 v{G+2*n+1}, v{G+2*n+1}")
        for n in range(16):
            e(f"v_add_f32 v{G+2*n}, 1.0, v{G+2*n}")
            e(f"v_add_f32 v{G+2*n+1}, 1.0, v{G+2*n+1}")
        for n in range(16):
            e(f"v_rcp_f32 v{G+2*n}, v{G+2*n}")
            e(f"v_rcp_f32 v{G+2*n+1}, v{G+2*n+1}")
        for n in range(16):
            e(f"v_fma_f32 v{G+2*n}, v{G+2*n}, -2.0, 1.0")
        for n in range(16):
            e(f"v_mul_f32 v{G+2*n}, v{G+2*n}, v{G+2*n+1}")
        for al in range(2):
            e(f"s_mov_b32 s{S_TMP+al*3}, {(2*w+al)*16384}")
        P = VT + 32
        for al in range(2):
            for r in range(4):
                n0 = (al * 4 + r) * 2
                e(f"v_cvt_pk_bf16_f32 v{P+al*4+r}, v{G+2*n0}, v{G+2*(n0+1)}")
        for al in range(2):
            for r in range(4):
                off = f" offset:{r*1024}" if r else ""
                e(f"buffer_store_dword v{P+al*4+r}, v{V_O}, s[{SRD_O}:{SRD_O+3}], s{S_TMP+al*3} offen{off}")
        e("s_endpgm")
    E.label("L_end")
    e("s_endpgm")

    head = f"""; Kernarg layout for this problem (40 bytes, ptrs only, base s[0:1]):
; @launch grid=(256,1,1) block=(256,1,1) lds={LDS_TOTAL}
.amdgcn_target "amdgcn-amd-amdhsa--gfx950"
.text
.globl {NAME}_kernel
.p2align 8
.type {NAME}_kernel,@function
{NAME}_kernel:
"""
    tail = f""".section .rodata,"a"
.p2align 6
.amdhsa_kernel {NAME}_kernel
  .amdhsa_next_free_vgpr {NV + NACC}
  .amdhsa_next_free_sgpr 48
  .amdhsa_accum_offset {NV}
  .amdhsa_group_segment_fixed_size 0
  .amdhsa_kernarg_size 40
  .amdhsa_user_sgpr_count 2
  .amdhsa_user_sgpr_kernarg_segment_ptr 1
  .amdhsa_system_sgpr_workgroup_id_x 1
.end_amdhsa_kernel
"""
    return head + E.text() + tail


if __name__ == "__main__":
    out = sys.argv[1] if len(sys.argv) > 1 else f"cdna_kernels/{NAME}.s"
    open(out, "w").write(gen())
    print("wrote", out)
```

```python
import sys

NAME = "standalone__autoregressive_conv_wavernn__speech"
T, D, N2 = 1000, 512, 1024
ROWB = D * 2
XBATCH = T * ROWB
WBYTES = 5 * D * N2 * 2
LDS_WAVE = 136 * 256
LDS_TOTAL = 4 * LDS_WAVE

S_X, S_W, S_O = 4, 6, 8
SRD_X, SRD_W, SRD_O = 12, 16, 20
S_NT, S_MT, S_B, S_T0, S_E0, S_WAVE = 24, 25, 26, 27, 28, 29
S_SELLO, S_SELHI = 30, 31
S_WB = 32
S_SOFF = 33
S_LDSB = 38
S_FIX = 39
S_TMP = 40
S_C1, S_C2 = 41, 42
S_TMP2 = 43
V_LANE, V_T1, V_T2, V_T3 = 1, 2, 3, 23
V_A = 4
V_B = 14
V_D = 22
V_DT = 24
V_O = 25
V_L16 = 26
V_E = 27
V_AF = 32
V_RAW = 96
V_OP = 144
NV = 180
NACC = 128


class Emitter:
    def __init__(self):
        self.lines = []
        self.vm = []
        self.vm_done = 0

    def emit(self, s):
        self.lines.append("    " + s)

    def label(self, s):
        self.lines.append(s + ":")

    def comment(self, s):
        self.lines.append("    ; " + s)

    def vmem(self, s, tag):
        self.lines.append("    " + s)
        self.vm.append(tag)
        assert len(self.vm) - self.vm_done <= 63, "too many outstanding vmem ops"

    def wait_vm(self, tag):
        idx = [k for k, t in enumerate(self.vm) if t == tag]
        assert idx, f"no op with tag {tag}"
        last = idx[-1]
        if last < self.vm_done:
            return None
        n = len(self.vm) - 1 - last
        self.vm_done = last + 1
        assert n <= 63
        return f"s_waitcnt vmcnt({n})"

    def text(self):
        return "\n".join(self.lines) + "\n"


def acc(a, t):
    return (a * 4 + t) * 4


def gen(diag=False, no_mfma=False, no_bload=False, no_aread=False, l2pf=False):
    E = Emitter()
    e = E.emit
    nstamp = [0]
    def stamp():
        if diag:
            k = nstamp[0]
            nstamp[0] += 1
            e(f"s_memtime s[{48+2*k}:{49+2*k}]")
    e("s_cmp_ge_u32 s2, 256")
    e("s_cbranch_scc1 L_end")
    e(f"s_load_dwordx4 s[{S_X}:{S_X+3}], s[0:1], 0")
    e(f"s_load_dwordx2 s[{S_O}:{S_O+1}], s[0:1], 16")
    if diag:
        e("s_load_dwordx2 s[10:11], s[0:1], 24")
    stamp()
    e(f"s_and_b32 s{S_TMP}, s2, 7")
    e(f"s_lshr_b32 s{S_TMP2}, s2, 3")
    e(f"s_lshl_b32 s{S_NT}, s{S_TMP}, 1")
    e(f"s_and_b32 s{S_TMP}, s{S_TMP2}, 1")
    e(f"s_add_u32 s{S_NT}, s{S_NT}, s{S_TMP}")
    e(f"s_lshr_b32 s{S_MT}, s{S_TMP2}, 1")
    e(f"s_lshr_b32 s{S_B}, s{S_MT}, 3")
    e(f"s_and_b32 s{S_MT}, s{S_MT}, 7")
    e(f"s_lshl_b32 s{S_T0}, s{S_MT}, 7")
    e(f"s_lshl_b32 s{S_E0}, s{S_NT}, 5")
    e(f"v_and_b32 v{V_LANE}, 63, v0")
    e(f"v_lshrrev_b32 v{V_T1}, 6, v0")
    e(f"s_mov_b32 s{S_SELLO}, 0x05040100")
    e(f"v_readfirstlane_b32 s{S_WAVE}, v{V_T1}")
    e(f"s_mov_b32 s{S_SELHI}, 0x07060302")
    e(f"s_mov_b32 s{S_C1}, 0x4038aa3b")
    e(f"s_mov_b32 s{S_C2}, 0xbfb8aa3b")
    e(f"s_mul_i32 s{S_LDSB}, s{S_WAVE}, {LDS_WAVE}")
    e(f"s_lshl_b32 s{S_WB}, s{S_WAVE}, 18")
    e(f"s_lshl_b32 s{S_TMP}, s{S_E0}, 1")
    e(f"s_add_u32 s{S_WB}, s{S_WB}, s{S_TMP}")
    e(f"v_lshrrev_b32 v{V_T2}, 4, v{V_LANE}")
    e(f"v_and_b32 v{V_T3}, 15, v{V_LANE}")
    e(f"v_lshlrev_b32 v{V_B}, 14, v{V_T2}")
    e(f"v_lshl_add_u32 v{V_B}, v{V_T3}, 2, v{V_B}")
    for j in range(1, 8):
        e(f"v_add_u32 v{V_B+j}, {j*2048}, v{V_B}")
    e(f"v_lshrrev_b32 v{V_D}, 3, v{V_LANE}")
    e(f"s_sub_u32 s{S_TMP}, s{S_T0}, 8")
    e(f"v_add_u32 v{V_D}, s{S_TMP}, v{V_D}")
    e(f"v_lshlrev_b32 v{V_D}, 10, v{V_D}")
    e(f"v_lshlrev_b32 v{V_E}, 1, v{V_T2}")
    e(f"v_and_b32 v{V_E}, 6, v{V_E}")
    e(f"v_and_b32 v{V_E+1}, 7, v{V_LANE}")
    e(f"v_xor_b32 v{V_E}, v{V_E}, v{V_E+1}")
    e(f"v_lshlrev_b32 v{V_E}, 4, v{V_E}")
    e(f"s_lshl_b32 s{S_TMP}, s{S_WAVE}, 8")
    e(f"v_add3_u32 v{V_D}, v{V_D}, v{V_E}, s{S_TMP}")
    e(f"s_cmp_eq_u32 s{S_T0}, 0")
    e(f"s_cselect_b32 s{S_FIX}, 0x40000000, 0")
    e(f"v_lshlrev_b32 v{V_E}, 7, v{V_T3}")
    e(f"v_add_u32 v{V_E}, s{S_LDSB}, v{V_E}")
    e(f"v_lshrrev_b32 v{V_E+1}, 1, v{V_T3}")
    e(f"v_lshlrev_b32 v{V_E+2}, 4, v{V_T2}")
    for i in range(5):
        e(f"v_add_u32 v{V_E+3}, {i}, v{V_E+1}")
        e(f"v_and_b32 v{V_E+3}, 3, v{V_E+3}")
        e(f"v_lshlrev_b32 v{V_E+3}, 5, v{V_E+3}")
        e(f"v_xor_b32 v{V_E+3}, v{V_E+3}, v{V_E+2}")
        e(f"v_add_u32 v{V_A+2*i}, v{V_E}, v{V_E+3}")
        if i:
            e(f"v_add_u32 v{V_A+2*i}, {i*256}, v{V_A+2*i}")
        e(f"v_xor_b32 v{V_A+2*i+1}, 64, v{V_A+2*i}")
    e(f"v_lshlrev_b32 v{V_L16}, 4, v{V_LANE}")
    e(f"v_lshlrev_b32 v{V_O}, 2, v{V_T2}")
    e(f"v_add_u32 v{V_O}, s{S_T0}, v{V_O}")
    e(f"v_lshlrev_b32 v{V_O}, 10, v{V_O}")
    e(f"v_lshlrev_b32 v{V_E}, 2, v{V_T3}")
    e(f"s_lshl_b32 s{S_TMP}, s{S_E0}, 1")
    e(f"v_add3_u32 v{V_O}, v{V_O}, v{V_E}, s{S_TMP}")
    e("s_waitcnt lgkmcnt(0)")
    e(f"s_mul_i32 s{S_TMP}, s{S_B}, {XBATCH}")
    e(f"s_add_u32 s{SRD_X}, s{S_X}, s{S_TMP}")
    e(f"s_addc_u32 s{SRD_X+1}, s{S_X+1}, 0")
    e(f"s_and_b32 s{SRD_X+1}, s{SRD_X+1}, 0xffff")
    e(f"s_mov_b32 s{SRD_X+2}, {XBATCH}")
    e(f"s_mov_b32 s{SRD_X+3}, 0x00020000")
    e(f"s_mov_b32 s{SRD_W}, s{S_W}")
    e(f"s_and_b32 s{SRD_W+1}, s{S_W+1}, 0xffff")
    e(f"s_mov_b32 s{SRD_W+2}, {WBYTES}")
    e(f"s_mov_b32 s{SRD_W+3}, 0x00020000")
    e(f"s_add_u32 s{SRD_O}, s{S_O}, s{S_TMP}")
    e(f"s_addc_u32 s{SRD_O+1}, s{S_O+1}, 0")
    e(f"s_and_b32 s{SRD_O+1}, s{SRD_O+1}, 0xffff")
    e(f"s_mov_b32 s{SRD_O+2}, {XBATCH}")
    e(f"s_mov_b32 s{SRD_O+3}, 0x00020000")

    if l2pf:
        e("s_lshr_b32 s45, s2, 3")
        e(f"s_lshl_b32 s44, s{S_WAVE}, 5")
        e("s_add_u32 s44, s44, s45")
        e("s_cmp_ge_u32 s44, 80")
        e("s_cbranch_scc1 L_nopf")
        e("s_lshr_b32 s45, s44, 1")
        e("s_lshl_b32 s45, s45, 17")
        e("s_and_b32 s46, s44, 1")
        e("s_lshl_b32 s46, s46, 10")
        e("s_add_u32 s45, s45, s46")
        e(f"s_and_b32 s46, s{S_NT}, 14")
        e("s_lshl_b32 s46, s46, 6")
        e("s_add_u32 s45, s45, s46")
        e(f"v_lshlrev_b32 v177, 11, v{V_LANE}")
        e(f"buffer_load_dword v176, v177, s[{SRD_W}:{SRD_W+3}], s45 offen")
        E.label("L_nopf")
    NS = 20

    def step_cfg(s):
        return s // 10, (s % 10) // 2, s % 2

    def b_loads(s):
        c, i, u = step_cfg(s)
        so = S_SOFF + (s % 4)
        rb = V_RAW + (s % 3) * 16
        lst = [("s", f"s_add_u32 s{so}, s{S_WB}, {(i*512 + 64*c + 32*u) * 2048}")]
        for j in range(8):
            lst.append(("v", f"buffer_load_dword v{rb+j}, v{V_B+j}, s[{SRD_W}:{SRD_W+3}], s{so} offen", ("B", s)))
        for j in range(8):
            lst.append(("v", f"buffer_load_dword v{rb+8+j}, v{V_B+j}, s[{SRD_W}:{SRD_W+3}], s{so} offen offset:1024", ("B", s)))
        return lst

    def dma_chunk(c):
        lst = []
        for g in range(17):
            lst.append(("s", f"s_add_u32 m0, s{S_LDSB}, {c*17408 + g*1024}"))
            if g == 0:
                lst.append(("s", f"s_add_u32 s{S_TMP}, s{S_FIX}, {128*c}"))
                lst.append(("s", f"v_add_u32 v{V_DT}, s{S_TMP}, v{V_D}"))
            else:
                lst.append(("s", f"v_add_u32 v{V_DT}, {128*c + g*8192}, v{V_D}"))
            lst.append(("v", f"buffer_load_dwordx4 v{V_DT}, s[{SRD_X}:{SRD_X+3}], 0 offen lds", ("X", c)))
        return lst

    def perms(s):
        rb = V_RAW + (s % 3) * 16
        ob = V_OP + (s % 2) * 16
        lst = []
        for h in range(2):
            for q in range(4):
                lst.append(("s", f"v_perm_b32 v{ob+(2*h)*4+q}, v{rb+8*h+2*q+1}, v{rb+8*h+2*q}, s{S_SELLO}"))
                lst.append(("s", f"v_perm_b32 v{ob+(2*h+1)*4+q}, v{rb+8*h+2*q+1}, v{rb+8*h+2*q}, s{S_SELHI}"))
        return lst

    def a_reads(s):
        c, i, u = step_cfg(s)
        ab = V_AF + (s % 2) * 32
        return [("s", f"ds_read_b128 v[{ab+4*a}:{ab+4*a+3}], v{V_A+2*i+u} offset:{c*17408 + a*2048}") for a in range(8)]

    def put(lst):
        for it in lst:
            if it[0] == "v":
                E.vmem(it[1], it[2])
            else:
                e(it[1])

    put(b_loads(0))
    put(dma_chunk(0))
    put(b_loads(1))
    w1 = E.wait_vm(("X", 0))
    e(w1)
    stamp()
    put(perms(0))
    put(a_reads(0))
    put(b_loads(2))

    for s in range(NS):
        c, i, u = step_cfg(s)
        if s in (1, 10):
            stamp()
        e("s_waitcnt lgkmcnt(0)")
        ab = V_AF + (s % 2) * 32
        ob = V_OP + (s % 2) * 16
        mf = []
        for a in range(8):
            for t in range(4):
                k = acc(a, t)
                cin = f"a[{k}:{k+3}]" if s > 0 else "0"
                mf.append(("s", f"v_mfma_f32_16x16x32_bf16 a[{k}:{k+3}], v[{ab+4*a}:{ab+4*a+3}], v[{ob+4*t}:{ob+4*t+3}], {cin}"))
        plan = []
        if s + 3 < NS and not no_bload:
            plan += [("L", it) for it in b_loads(s + 3)]
        if s + 1 < NS:
            if step_cfg(s + 1)[0] == 1 and step_cfg(s)[0] == 0:
                plan.append(("WX", 1))
            plan += [("L", it) for it in a_reads(s + 1)]
            if not no_bload or s + 1 < 3:
                plan.append(("WB", s + 1))
            plan += [("L", it) for it in perms(s + 1)]
        if s < 4:
            d1 = dma_chunk(1)
            cuts = [0, 5, 9, 13, 17]
            plan += [("L", it) for it in d1[3 * cuts[s] + (1 if cuts[s] else 0): 3 * cuts[s + 1] + 1]]
        nm, nf = len(mf), len(plan)
        fi = 0
        for k, m in enumerate(mf):
            if not no_mfma:
                e(m[1])
            want = (nf * (k + 1) + nm - 1) // nm
            while fi < min(want, nf):
                p = plan[fi]
                fi += 1
                if p[0] == "L":
                    put([p[1]])
                elif p[0] == "WX":
                    w = E.wait_vm(("X", p[1]))
                    if w:
                        e(w)
                elif p[0] == "WB":
                    w = E.wait_vm(("B", p[1]))
                    if w:
                        e(w)

    stamp()
    e("s_nop 7")
    e("s_nop 3")
    e(f"v_add_u32 v{V_T1}, s{S_LDSB}, v{V_L16}")
    for w in range(4):
        if w < 3:
            e(f"s_cmp_eq_u32 s{S_WAVE}, {w}")
            e(f"s_cbranch_scc1 L_fin{w}")
        else:
            e(f"s_branch L_fin{w}")
    VT = V_AF
    VS = V_AF + 96
    for w in range(4):
        E.label(f"L_fin{w}")
        for q in range(4):
            if q == w:
                continue
            for idx in range(8):
                k = 32 * q + 4 * idx
                e(f"ds_write_b128 v{V_T1}, a[{k}:{k+3}] offset:{q*8192 + idx*1024}")
        src = [p for p in range(4) if p != w]
        for n, p in enumerate(src):
            e(f"v_add_u32 v{V_E+n}, {p*LDS_WAVE + w*8192}, v{V_L16}")
        for idx in range(32):
            e(f"v_accvgpr_read_b32 v{VS+idx}, a{32*w+idx}")
        e("s_waitcnt lgkmcnt(0)")
        e("s_barrier")
        if diag:
            nstamp[0] = 5
        stamp()
        reads = [f"ds_read_b128 v[{VT+32*n+4*idx}:{VT+32*n+4*idx+3}], v{V_E+n} offset:{idx*1024}"
                 for n in range(3) for idx in range(8)]
        for r_ in reads[:12]:
            e(r_)
        e("s_waitcnt lgkmcnt(4)")
        for r_ in reads[12:20]:
            e(r_)
        for idx in range(32):
            e(f"v_add_f32 v{VS+idx}, v{VS+idx}, v{VT+idx}")
        e("s_waitcnt lgkmcnt(4)")
        for r_ in reads[20:]:
            e(r_)
        for idx in range(32):
            e(f"v_add_f32 v{VS+idx}, v{VS+idx}, v{VT+32+idx}")
        e("s_waitcnt lgkmcnt(0)")
        for idx in range(32):
            e(f"v_add_f32 v{VS+idx}, v{VS+idx}, v{VT+64+idx}")
        G = VT
        outs = []
        for al in range(2):
            for r in range(4):
                for par in range(2):
                    f = VS + (al * 4 + par) * 4 + r
                    g = VS + (al * 4 + 2 + par) * 4 + r
                    outs.append((al, r, par, f, g))
        for n, (al, r, par, f, g) in enumerate(outs):
            e(f"v_mul_f32 v{G+2*n}, s{S_C1}, v{f}")
            e(f"v_mul_f32 v{G+2*n+1}, s{S_C2}, v{g}")
        for n in range(16):
            e(f"v_exp_f32 v{G+2*n}, v{G+2*n}")
            e(f"v_exp_f32 v{G+2*n+1}, v{G+2*n+1}")
        for n in range(16):
            e(f"v_add_f32 v{G+2*n}, 1.0, v{G+2*n}")
            e(f"v_add_f32 v{G+2*n+1}, 1.0, v{G+2*n+1}")
        for n in range(16):
            e(f"v_rcp_f32 v{G+2*n}, v{G+2*n}")
            e(f"v_rcp_f32 v{G+2*n+1}, v{G+2*n+1}")
        for n in range(16):
            e(f"v_fma_f32 v{G+2*n}, v{G+2*n}, -2.0, 1.0")
        for n in range(16):
            e(f"v_mul_f32 v{G+2*n}, v{G+2*n}, v{G+2*n+1}")
        for al in range(2):
            e(f"s_mov_b32 s{S_TMP+al*3}, {(2*w+al)*16384}")
        P = VT + 32
        for al in range(2):
            for r in range(4):
                n0 = (al * 4 + r) * 2
                e(f"v_cvt_pk_bf16_f32 v{P+al*4+r}, v{G+2*n0}, v{G+2*(n0+1)}")
        for al in range(2):
            for r in range(4):
                off = f" offset:{r*1024}" if r else ""
                e(f"buffer_store_dword v{P+al*4+r}, v{V_O}, s[{SRD_O}:{SRD_O+3}], s{S_TMP+al*3} offen{off}")
        if diag:
            nstamp[0] = 6
            stamp()
            e("s_waitcnt vmcnt(0) lgkmcnt(0)")
            e(f"s_lshl_b32 s{S_TMP}, s2, 2")
            e(f"s_add_u32 s{S_TMP}, s{S_TMP}, s{S_WAVE}")
            e(f"s_lshl_b32 s{S_TMP}, s{S_TMP}, 6")
            e(f"s_add_u32 s12, s10, s{S_TMP}")
            e(f"s_addc_u32 s13, s11, 0")
            e("s_and_b32 s13, s13, 0xffff")
            e("s_mov_b32 s14, 64")
            e("s_mov_b32 s15, 0x00020000")
            e(f"v_cmp_eq_u32 vcc, 0, v{V_LANE}")
            e("s_and_saveexec_b64 s[44:45], vcc")
            e("v_mov_b32 v1, 0")
            for k in range(7):
                e(f"v_mov_b32 v2, s{48+2*k}")
                e(f"v_mov_b32 v3, s{49+2*k}")
                e(f"buffer_store_dwordx2 v[2:3], v1, s[12:15], 0 offen offset:{8*k}")
                e("s_nop 1")
        e("s_endpgm")
    E.label("L_end")
    e("s_endpgm")

    head = f"""; Kernarg layout for this problem (40 bytes, ptrs only, base s[0:1]):
; @launch grid=(256,1,1) block=(256,1,1) lds={LDS_TOTAL}
.amdgcn_target "amdgcn-amd-amdhsa--gfx950"
.text
.globl {NAME}_kernel
.p2align 8
.type {NAME}_kernel,@function
{NAME}_kernel:
"""
    tail = f""".section .rodata,"a"
.p2align 6
.amdhsa_kernel {NAME}_kernel
  .amdhsa_next_free_vgpr {NV + NACC}
  .amdhsa_next_free_sgpr 64
  .amdhsa_accum_offset {NV}
  .amdhsa_group_segment_fixed_size 0
  .amdhsa_kernarg_size 40
  .amdhsa_user_sgpr_count 2
  .amdhsa_user_sgpr_kernarg_segment_ptr 1
  .amdhsa_system_sgpr_workgroup_id_x 1
.end_amdhsa_kernel
"""
    return head + E.text() + tail


if __name__ == "__main__":
    out = sys.argv[1] if len(sys.argv) > 1 else f"cdna_kernels/{NAME}.s"
    opts = sys.argv[2:]
    open(out, "w").write(gen(diag="diag" in opts, no_mfma="no_mfma" in opts, no_bload="no_bload" in opts, l2pf="l2pf" in opts))
    print("wrote", out)
```

```python
import sys

NAME = "standalone__autoregressive_conv_wavernn__speech"
T, D, N2 = 1000, 512, 1024
ROWB = D * 2
XBATCH = T * ROWB
WBYTES = 5 * D * N2 * 2
LDS_WAVE = 136 * 256
LDS_TOTAL = 4 * LDS_WAVE

S_X, S_W, S_O = 4, 6, 8
SRD_X, SRD_W, SRD_O = 12, 16, 20
S_NT, S_MT, S_B, S_T0, S_E0, S_WAVE = 24, 25, 26, 27, 28, 29
S_SELLO, S_SELHI = 30, 31
S_WB = 32
S_SOFF = 33
S_LDSB = 38
S_FIX = 39
S_TMP = 40
S_C1, S_C2 = 41, 42
S_TMP2 = 43
V_LANE, V_T1, V_T2, V_T3 = 1, 2, 3, 23
V_A = 4
V_B = 14
V_D = 22
V_DT = 24
V_O = 25
V_L16 = 26
V_E = 27
V_AF = 32
V_RAW = 96
V_OP = 144
NV = 180
NACC = 128


class Emitter:
    def __init__(self):
        self.lines = []
        self.vm = []
        self.vm_done = 0

    def emit(self, s):
        self.lines.append("    " + s)

    def label(self, s):
        self.lines.append(s + ":")

    def comment(self, s):
        self.lines.append("    ; " + s)

    def vmem(self, s, tag):
        self.lines.append("    " + s)
        self.vm.append(tag)
        assert len(self.vm) - self.vm_done <= 63, "too many outstanding vmem ops"

    def wait_vm(self, tag):
        idx = [k for k, t in enumerate(self.vm) if t == tag]
        assert idx, f"no op with tag {tag}"
        last = idx[-1]
        if last < self.vm_done:
            return None
        n = len(self.vm) - 1 - last
        self.vm_done = last + 1
        assert n <= 63
        return f"s_waitcnt vmcnt({n})"

    def text(self):
        return "\n".join(self.lines) + "\n"


def acc(a, t):
    return (a * 4 + t) * 4


def gen(diag=False, no_mfma=False, no_bload=False, no_aread=False, l2pf=False):
    E = Emitter()
    e = E.emit
    nstamp = [0]
    def stamp():
        if diag:
            k = nstamp[0]
            nstamp[0] += 1
            e(f"s_memtime s[{48+2*k}:{49+2*k}]")
    e("s_cmp_ge_u32 s2, 256")
    e("s_cbranch_scc1 L_end")
    e(f"s_load_dwordx4 s[{S_X}:{S_X+3}], s[0:1], 0")
    e(f"s_load_dwordx2 s[{S_O}:{S_O+1}], s[0:1], 16")
    if diag:
        e("s_load_dwordx2 s[10:11], s[0:1], 24")
    stamp()
    e(f"s_and_b32 s{S_TMP}, s2, 7")
    e(f"s_lshr_b32 s{S_TMP2}, s2, 3")
    e(f"s_lshl_b32 s{S_NT}, s{S_TMP}, 1")
    e(f"s_and_b32 s{S_TMP}, s{S_TMP2}, 1")
    e(f"s_add_u32 s{S_NT}, s{S_NT}, s{S_TMP}")
    e(f"s_lshr_b32 s{S_MT}, s{S_TMP2}, 1")
    e(f"s_lshr_b32 s{S_B}, s{S_MT}, 3")
    e(f"s_and_b32 s{S_MT}, s{S_MT}, 7")
    e(f"s_lshl_b32 s{S_T0}, s{S_MT}, 7")
    e(f"s_lshl_b32 s{S_E0}, s{S_NT}, 5")
    e(f"v_and_b32 v{V_LANE}, 63, v0")
    e(f"v_lshrrev_b32 v{V_T1}, 6, v0")
    e(f"s_mov_b32 s{S_SELLO}, 0x05040100")
    e(f"v_readfirstlane_b32 s{S_WAVE}, v{V_T1}")
    e(f"s_mov_b32 s{S_SELHI}, 0x07060302")
    e(f"s_mov_b32 s{S_C1}, 0x4038aa3b")
    e(f"s_mov_b32 s{S_C2}, 0xbfb8aa3b")
    e(f"s_mul_i32 s{S_LDSB}, s{S_WAVE}, {LDS_WAVE}")
    e(f"s_lshl_b32 s{S_WB}, s{S_WAVE}, 18")
    e(f"s_lshl_b32 s{S_TMP}, s{S_E0}, 1")
    e(f"s_add_u32 s{S_WB}, s{S_WB}, s{S_TMP}")
    e(f"v_lshrrev_b32 v{V_T2}, 4, v{V_LANE}")
    e(f"v_and_b32 v{V_T3}, 15, v{V_LANE}")
    e(f"v_lshlrev_b32 v{V_B}, 14, v{V_T2}")
    e(f"v_lshl_add_u32 v{V_B}, v{V_T3}, 2, v{V_B}")
    for j in range(1, 8):
        e(f"v_add_u32 v{V_B+j}, {j*2048}, v{V_B}")
    e(f"v_lshrrev_b32 v{V_D}, 3, v{V_LANE}")
    e(f"s_sub_u32 s{S_TMP}, s{S_T0}, 8")
    e(f"v_add_u32 v{V_D}, s{S_TMP}, v{V_D}")
    e(f"v_lshlrev_b32 v{V_D}, 10, v{V_D}")
    e(f"v_lshlrev_b32 v{V_E}, 1, v{V_T2}")
    e(f"v_and_b32 v{V_E}, 6, v{V_E}")
    e(f"v_and_b32 v{V_E+1}, 7, v{V_LANE}")
    e(f"v_xor_b32 v{V_E}, v{V_E}, v{V_E+1}")
    e(f"v_lshlrev_b32 v{V_E}, 4, v{V_E}")
    e(f"s_lshl_b32 s{S_TMP}, s{S_WAVE}, 8")
    e(f"v_add3_u32 v{V_D}, v{V_D}, v{V_E}, s{S_TMP}")
    e(f"s_cmp_eq_u32 s{S_T0}, 0")
    e(f"s_cselect_b32 s{S_FIX}, 0x40000000, 0")
    e(f"v_lshlrev_b32 v{V_E}, 7, v{V_T3}")
    e(f"v_add_u32 v{V_E}, s{S_LDSB}, v{V_E}")
    e(f"v_lshrrev_b32 v{V_E+1}, 1, v{V_T3}")
    e(f"v_lshlrev_b32 v{V_E+2}, 4, v{V_T2}")
    for i in range(5):
        e(f"v_add_u32 v{V_E+3}, {i}, v{V_E+1}")
        e(f"v_and_b32 v{V_E+3}, 3, v{V_E+3}")
        e(f"v_lshlrev_b32 v{V_E+3}, 5, v{V_E+3}")
        e(f"v_xor_b32 v{V_E+3}, v{V_E+3}, v{V_E+2}")
        e(f"v_add_u32 v{V_A+2*i}, v{V_E}, v{V_E+3}")
        if i:
            e(f"v_add_u32 v{V_A+2*i}, {i*256}, v{V_A+2*i}")
        e(f"v_xor_b32 v{V_A+2*i+1}, 64, v{V_A+2*i}")
    e(f"v_lshlrev_b32 v{V_L16}, 4, v{V_LANE}")
    e(f"v_lshlrev_b32 v{V_O}, 2, v{V_T2}")
    e(f"v_add_u32 v{V_O}, s{S_T0}, v{V_O}")
    e(f"v_lshlrev_b32 v{V_O}, 10, v{V_O}")
    e(f"v_lshlrev_b32 v{V_E}, 2, v{V_T3}")
    e(f"s_lshl_b32 s{S_TMP}, s{S_E0}, 1")
    e(f"v_add3_u32 v{V_O}, v{V_O}, v{V_E}, s{S_TMP}")
    e("s_waitcnt lgkmcnt(0)")
    if diag == 2:
        stamp()
    e(f"s_mul_i32 s{S_TMP}, s{S_B}, {XBATCH}")
    e(f"s_add_u32 s{SRD_X}, s{S_X}, s{S_TMP}")
    e(f"s_addc_u32 s{SRD_X+1}, s{S_X+1}, 0")
    e(f"s_and_b32 s{SRD_X+1}, s{SRD_X+1}, 0xffff")
    e(f"s_mov_b32 s{SRD_X+2}, {XBATCH}")
    e(f"s_mov_b32 s{SRD_X+3}, 0x00020000")
    e(f"s_mov_b32 s{SRD_W}, s{S_W}")
    e(f"s_and_b32 s{SRD_W+1}, s{S_W+1}, 0xffff")
    e(f"s_mov_b32 s{SRD_W+2}, {WBYTES}")
    e(f"s_mov_b32 s{SRD_W+3}, 0x00020000")
    e(f"s_add_u32 s{SRD_O}, s{S_O}, s{S_TMP}")
    e(f"s_addc_u32 s{SRD_O+1}, s{S_O+1}, 0")
    e(f"s_and_b32 s{SRD_O+1}, s{SRD_O+1}, 0xffff")
    e(f"s_mov_b32 s{SRD_O+2}, {XBATCH}")
    e(f"s_mov_b32 s{SRD_O+3}, 0x00020000")

    NS = 20

    def pf_block():
        e("s_lshr_b32 s45, s2, 3")
        e(f"s_lshl_b32 s44, s{S_WAVE}, 5")
        e("s_add_u32 s44, s44, s45")
        e("s_cmp_ge_u32 s44, 80")
        e("s_cbranch_scc1 L_nopf")
        e("s_lshr_b32 s45, s44, 1")
        e("s_lshl_b32 s45, s45, 17")
        e("s_and_b32 s46, s44, 1")
        e("s_lshl_b32 s46, s46, 10")
        e("s_add_u32 s45, s45, s46")
        e(f"s_and_b32 s46, s{S_NT}, 14")
        e("s_lshl_b32 s46, s46, 6")
        e("s_add_u32 s45, s45, s46")
        e(f"v_lshlrev_b32 v177, 11, v{V_LANE}")
        e(f"buffer_load_dword v176, v177, s[{SRD_W}:{SRD_W+3}], s45 offen")
        E.label("L_nopf")

    def step_cfg(s):
        return s // 10, (s % 10) // 2, s % 2

    def b_loads(s):
        c, i, u = step_cfg(s)
        so = S_SOFF + (s % 4)
        rb = V_RAW + (s % 3) * 16
        lst = [("s", f"s_add_u32 s{so}, s{S_WB}, {(i*512 + 64*c + 32*u) * 2048}")]
        for j in range(8):
            lst.append(("v", f"buffer_load_dword v{rb+j}, v{V_B+j}, s[{SRD_W}:{SRD_W+3}], s{so} offen", ("B", s)))
        for j in range(8):
            lst.append(("v", f"buffer_load_dword v{rb+8+j}, v{V_B+j}, s[{SRD_W}:{SRD_W+3}], s{so} offen offset:1024", ("B", s)))
        return lst

    def dma_chunk(c):
        lst = []
        for g in range(17):
            lst.append(("s", f"s_add_u32 m0, s{S_LDSB}, {c*17408 + g*1024}"))
            if g == 0:
                lst.append(("s", f"s_add_u32 s{S_TMP}, s{S_FIX}, {128*c}"))
                lst.append(("s", f"v_add_u32 v{V_DT}, s{S_TMP}, v{V_D}"))
            else:
                lst.append(("s", f"v_add_u32 v{V_DT}, {128*c + g*8192}, v{V_D}"))
            lst.append(("v", f"buffer_load_dwordx4 v{V_DT}, s[{SRD_X}:{SRD_X+3}], 0 offen lds", ("X", c, g)))
        return lst

    def perms(s):
        rb = V_RAW + (s % 3) * 16
        ob = V_OP + (s % 2) * 16
        lst = []
        for h in range(2):
            for q in range(4):
                lst.append(("s", f"v_perm_b32 v{ob+(2*h)*4+q}, v{rb+8*h+2*q+1}, v{rb+8*h+2*q}, s{S_SELLO}"))
                lst.append(("s", f"v_perm_b32 v{ob+(2*h+1)*4+q}, v{rb+8*h+2*q+1}, v{rb+8*h+2*q}, s{S_SELHI}"))
        return lst

    def a_reads(s):
        c, i, u = step_cfg(s)
        ab = V_AF + (s % 2) * 32
        return [("s", f"ds_read_b128 v[{ab+4*a}:{ab+4*a+3}], v{V_A+2*i+u} offset:{c*17408 + a*2048}") for a in range(8)]

    def put(lst):
        for it in lst:
            if it[0] == "v":
                E.vmem(it[1], it[2])
            else:
                e(it[1])

    put(b_loads(0))
    put(dma_chunk(0))
    put(b_loads(1))
    if l2pf:
        pf_block()
    if diag == 2:
        stamp()
    e(E.wait_vm(("B", 0)))
    put(perms(0))
    e(E.wait_vm(("X", 0, 1)))
    put(a_reads(0)[:1])
    for s in range(NS):
        c, i, u = step_cfg(s)
        if s in (1, 10) and diag != 2:
            stamp()
        if s > 0:
            e("s_waitcnt lgkmcnt(0)")
        ab = V_AF + (s % 2) * 32
        ob = V_OP + (s % 2) * 16
        mf = []
        for a in range(8):
            for t in range(4):
                k = acc(a, t)
                cin = f"a[{k}:{k+3}]" if s > 0 else "0"
                mf.append(("s", f"v_mfma_f32_16x16x32_bf16 a[{k}:{k+3}], v[{ab+4*a}:{ab+4*a+3}], v[{ob+4*t}:{ob+4*t+3}], {cin}"))
        plan = []
        if s + 3 < NS and not no_bload:
            plan += [("L", it) for it in b_loads(s + 3)]
        if s + 1 < NS:
            if step_cfg(s + 1)[0] == 1 and step_cfg(s)[0] == 0:
                plan.append(("WX", 1))
            plan += [("L", it) for it in a_reads(s + 1)]
            if not no_bload or s + 1 < 3:
                plan.append(("WB", s + 1))
            plan += [("L", it) for it in perms(s + 1)]
        if 1 <= s < 5:
            d1 = dma_chunk(1)
            cuts = [0, 5, 9, 13, 17]
            q = s - 1
            plan += [("L", it) for it in d1[3 * cuts[q] + (1 if cuts[q] else 0): 3 * cuts[q + 1] + 1]]
        nm, nf = len(mf), len(plan)
        fi = 0
        if s == 0:
            ar = a_reads(0)
            for a in range(8):
                if a < 7:
                    w = E.wait_vm(("X", 0, 2 * a + 3))
                    if w:
                        e(w)
                    put(ar[a + 1:a + 2])
                    e("s_waitcnt lgkmcnt(1)")
                else:
                    e("s_waitcnt lgkmcnt(0)")
                for m in mf[4 * a:4 * a + 4]:
                    e(m[1])
                if a == 3:
                    put(b_loads(2))
            mf = []
            nm = 1
        for k, m in enumerate(mf if mf else [None]):
            if m is None:
                want = nf
                while fi < nf:
                    p = plan[fi]
                    fi += 1
                    if p[0] == "L":
                        put([p[1]])
                    elif p[0] == "WX":
                        w = E.wait_vm(("X", p[1], p[2] if len(p) > 2 else 16))
                        if w:
                            e(w)
                    elif p[0] == "WB":
                        w = E.wait_vm(("B", p[1]))
                        if w:
                            e(w)
                continue
            if not no_mfma:
                e(m[1])
            want = (nf * (k + 1) + nm - 1) // nm
            while fi < min(want, nf):
                p = plan[fi]
                fi += 1
                if p[0] == "L":
                    put([p[1]])
                elif p[0] == "WX":
                    w = E.wait_vm(("X", p[1], p[2] if len(p) > 2 else 16))
                    if w:
                        e(w)
                elif p[0] == "WB":
                    w = E.wait_vm(("B", p[1]))
                    if w:
                        e(w)

    stamp()
    e("s_nop 7")
    e("s_nop 3")
    e(f"v_add_u32 v{V_T1}, s{S_LDSB}, v{V_L16}")
    for w in range(4):
        if w < 3:
            e(f"s_cmp_eq_u32 s{S_WAVE}, {w}")
            e(f"s_cbranch_scc1 L_fin{w}")
        else:
            e(f"s_branch L_fin{w}")
    VT = V_AF
    VS = V_AF + 96
    for w in range(4):
        E.label(f"L_fin{w}")
        for q in range(4):
            if q == w:
                continue
            for idx in range(8):
                k = 32 * q + 4 * idx
                e(f"ds_write_b128 v{V_T1}, a[{k}:{k+3}] offset:{q*8192 + idx*1024}")
        src = [p for p in range(4) if p != w]
        for n, p in enumerate(src):
            e(f"v_add_u32 v{V_E+n}, {p*LDS_WAVE + w*8192}, v{V_L16}")
        for idx in range(32):
            e(f"v_accvgpr_read_b32 v{VS+idx}, a{32*w+idx}")
        e("s_waitcnt lgkmcnt(0)")
        e("s_barrier")
        if diag:
            nstamp[0] = 5
        stamp()
        reads = [f"ds_read_b128 v[{VT+32*n+4*idx}:{VT+32*n+4*idx+3}], v{V_E+n} offset:{idx*1024}"
                 for n in range(3) for idx in range(8)]
        for r_ in reads[:12]:
            e(r_)
        e("s_waitcnt lgkmcnt(4)")
        for r_ in reads[12:20]:
            e(r_)
        for idx in range(32):
            e(f"v_add_f32 v{VS+idx}, v{VS+idx}, v{VT+idx}")
        e("s_waitcnt lgkmcnt(4)")
        for r_ in reads[20:]:
            e(r_)
        for idx in range(32):
            e(f"v_add_f32 v{VS+idx}, v{VS+idx}, v{VT+32+idx}")
        e("s_waitcnt lgkmcnt(0)")
        for idx in range(32):
            e(f"v_add_f32 v{VS+idx}, v{VS+idx}, v{VT+64+idx}")
        G = VT
        outs = []
        for al in range(2):
            for r in range(4):
                for par in range(2):
                    f = VS + (al * 4 + par) * 4 + r
                    g = VS + (al * 4 + 2 + par) * 4 + r
                    outs.append((al, r, par, f, g))
        for n, (al, r, par, f, g) in enumerate(outs):
            e(f"v_mul_f32 v{G+2*n}, s{S_C1}, v{f}")
            e(f"v_mul_f32 v{G+2*n+1}, s{S_C2}, v{g}")
        for n in range(16):
            e(f"v_exp_f32 v{G+2*n}, v{G+2*n}")
            e(f"v_exp_f32 v{G+2*n+1}, v{G+2*n+1}")
        for n in range(16):
            e(f"v_add_f32 v{G+2*n}, 1.0, v{G+2*n}")
            e(f"v_add_f32 v{G+2*n+1}, 1.0, v{G+2*n+1}")
        for n in range(16):
            e(f"v_rcp_f32 v{G+2*n}, v{G+2*n}")
            e(f"v_rcp_f32 v{G+2*n+1}, v{G+2*n+1}")
        for n in range(16):
            e(f"v_fma_f32 v{G+2*n}, v{G+2*n}, -2.0, 1.0")
        for n in range(16):
            e(f"v_mul_f32 v{G+2*n}, v{G+2*n}, v{G+2*n+1}")
        for al in range(2):
            e(f"s_mov_b32 s{S_TMP+al*3}, {(2*w+al)*16384}")
        P = VT + 32
        for al in range(2):
            for r in range(4):
                n0 = (al * 4 + r) * 2
                e(f"v_cvt_pk_bf16_f32 v{P+al*4+r}, v{G+2*n0}, v{G+2*(n0+1)}")
        for al in range(2):
            for r in range(4):
                off = f" offset:{r*1024}" if r else ""
                e(f"buffer_store_dword v{P+al*4+r}, v{V_O}, s[{SRD_O}:{SRD_O+3}], s{S_TMP+al*3} offen{off}")
        if diag:
            nstamp[0] = 6
            stamp()
            e("s_waitcnt vmcnt(0) lgkmcnt(0)")
            e(f"s_lshl_b32 s{S_TMP}, s2, 2")
            e(f"s_add_u32 s{S_TMP}, s{S_TMP}, s{S_WAVE}")
            e(f"s_lshl_b32 s{S_TMP}, s{S_TMP}, 6")
            e(f"s_add_u32 s12, s10, s{S_TMP}")
            e(f"s_addc_u32 s13, s11, 0")
            e("s_and_b32 s13, s13, 0xffff")
            e("s_mov_b32 s14, 64")
            e("s_mov_b32 s15, 0x00020000")
            e(f"v_cmp_eq_u32 vcc, 0, v{V_LANE}")
            e("s_and_saveexec_b64 s[44:45], vcc")
            e("v_mov_b32 v1, 0")
            for k in range(7):
                e(f"v_mov_b32 v2, s{48+2*k}")
                e(f"v_mov_b32 v3, s{49+2*k}")
                e(f"buffer_store_dwordx2 v[2:3], v1, s[12:15], 0 offen offset:{8*k}")
                e("s_nop 1")
        e("s_endpgm")
    E.label("L_end")
    e("s_endpgm")

    head = f"""; Kernarg layout for this problem (40 bytes, ptrs only, base s[0:1]):
; @launch grid=(256,1,1) block=(256,1,1) lds={LDS_TOTAL}
.amdgcn_target "amdgcn-amd-amdhsa--gfx950"
.text
.globl {NAME}_kernel
.p2align 8
.type {NAME}_kernel,@function
{NAME}_kernel:
"""
    tail = f""".section .rodata,"a"
.p2align 6
.amdhsa_kernel {NAME}_kernel
  .amdhsa_next_free_vgpr {NV + NACC}
  .amdhsa_next_free_sgpr 64
  .amdhsa_accum_offset {NV}
  .amdhsa_group_segment_fixed_size 0
  .amdhsa_kernarg_size 40
  .amdhsa_user_sgpr_count 2
  .amdhsa_user_sgpr_kernarg_segment_ptr 1
  .amdhsa_system_sgpr_workgroup_id_x 1
.end_amdhsa_kernel
"""
    return head + E.text() + tail


if __name__ == "__main__":
    out = sys.argv[1] if len(sys.argv) > 1 else f"cdna_kernels/{NAME}.s"
    opts = sys.argv[2:]
    open(out, "w").write(gen(diag=(2 if "diag2" in opts else ("diag" in opts)), no_mfma="no_mfma" in opts, no_bload="no_bload" in opts, l2pf="l2pf" in opts))
    print("wrote", out)
```
